```python
import torch

def _softmax(x, axis=-1):
    return torch.softmax(x, dim=axis)
def _gelu(x):
    return torch.nn.functional.gelu(x, approximate="tanh")
def _silu(x):
    return torch.nn.functional.silu(x)
def _sigmoid(x):
    return torch.sigmoid(x)
def _layernorm(x, axis=-1, eps=1e-5):
    m = x.mean(dim=axis, keepdim=True)
    v = x.var(dim=axis, keepdim=True, unbiased=False)
    return (x - m) / torch.sqrt(v + eps)
def _scatter_add(tgt, idx, src, axis=0):
    return tgt.clone().index_add_(axis, idx, src)
def _segment_sum(src, seg, n):
    out = torch.zeros((n,) + src.shape[1:], dtype=src.dtype)
    return out.index_add_(0, seg, src)
def _pad(x, pw):
    flat = tuple(v for pair in reversed(pw) for v in pair)
    return torch.nn.functional.pad(x, flat)

kernel_name = 'sequential_preLN__ssm_conv_s4d__glu_gated_geglu__prompt'

def setup_inputs():

    _w = (lambda a: (lambda t: t.to(torch.bfloat16) if t.is_floating_point() else t)(torch.as_tensor(a)))
    def _A_setup():
        Bsz, L, D, N = 1, 2048, 640, 128
        return {
            "u": _w((lambda *s: torch.randn(*s, dtype=torch.bfloat16) * 0.05)(Bsz, L, D)),
            "log_A_real": _w((lambda *s: torch.randn(*s, dtype=torch.bfloat16) * 6.4)(D, N) * 0.5),
            "A_imag": _w((lambda *s: torch.randn(*s, dtype=torch.bfloat16) * 0.05)(D, N) * 3.14),
            "C_real": _w((lambda *s: torch.randn(*s, dtype=torch.bfloat16) * 0.05)(D, N) / N ** 0.5),
            "C_imag": _w((lambda *s: torch.randn(*s, dtype=torch.bfloat16) * 0.05)(D, N) / N ** 0.5),
            "log_dt": _w((lambda *s: torch.randn(*s, dtype=torch.bfloat16) * 0.05)(D) * 0.5 - 4.0),
            "D_skip": _w((lambda *s: torch.randn(*s, dtype=torch.bfloat16) * 0.05)(D)),
        }
    _A_in = _A_setup()

    def _B_setup():
        B, S, Dm, Df = 1, 2048, 640, 1728
        return {
            "x": _w((lambda *s: torch.randn(*s, dtype=torch.bfloat16) * 0.05)(B, S, Dm)),
            "w_gate": _w((lambda *s: torch.randn(*s, dtype=torch.bfloat16) * 0.4)(Dm, Df) * (Dm ** -0.5)),
            "w_up": _w((lambda *s: torch.randn(*s, dtype=torch.bfloat16) * 0.4)(Dm, Df) * (Dm ** -0.5)),
            "w_down": _w((lambda *s: torch.randn(*s, dtype=torch.bfloat16) * 0.4)(Df, Dm) * (Df ** -0.5)),
        }
    _B_in = _B_setup()

    return {
        "A_u": _A_in["u"],
        "A_log_A_real": _A_in["log_A_real"],
        "A_A_imag": _A_in["A_imag"],
        "A_C_real": _A_in["C_real"],
        "A_C_imag": _A_in["C_imag"],
        "A_log_dt": _A_in["log_dt"],
        "A_D_skip": _A_in["D_skip"],
        "B_x": _B_in["x"],
        "B_w_gate": _B_in["w_gate"],
        "B_w_up": _B_in["w_up"],
        "B_w_down": _B_in["w_down"],
    }

def reference(A_u, A_log_A_real, A_A_imag, A_C_real, A_C_imag, A_log_dt, A_D_skip, B_x, B_w_gate, B_w_up, B_w_down):
    def _A_ref(u, log_A_real, A_imag, C_real, C_imag, log_dt, D_skip):
        L = u.shape[1]
        dt = torch.exp(log_dt)
        A = -torch.exp(log_A_real) + 1j * A_imag
        C = (C_real + 1j * C_imag) * dt[:, None]
        pos = (lambda x, dt: x.to(dt))(torch.arange(L), log_dt.dtype)
        P = torch.exp((A * dt[:, None])[:, :, None] * pos[None, None, :])
        K = 2.0 * torch.einsum("dn,dnl->dl", C, P).real
        L2 = 2 * L
        u_t = (lambda x, *d: x.permute(*d))(u, 0, 2, 1)
        Kf = (lambda x, *a, **k: torch.fft.rfft(x.float(), *a, **k))(K, L2)
        Uf = (lambda x, *a, **k: torch.fft.rfft(x.float(), *a, **k))(u_t, L2)
        y = (lambda x, *a, **k: torch.fft.irfft(x, *a, **k).to(torch.bfloat16))(Uf * Kf[None, :, :], L2)[:, :, :L]
        y = (lambda x, *d: x.permute(*d))(y, 0, 2, 1)
        return y + u * D_skip[None, None, :]

    def _B_ref(x, w_gate, w_up, w_down):
        g = torch.einsum("bsd,df->bsf", x, w_gate)
        u = torch.einsum("bsd,df->bsf", x, w_up)
        h = _gelu(g) * u
        return torch.einsum("bsf,fd->bsd", h, w_down)

    x = A_u
    h = x + _A_ref(_layernorm(x, axis=-1), A_log_A_real, A_A_imag, A_C_real, A_C_imag, A_log_dt, A_D_skip)
    h2 = h + _B_ref(_layernorm(h, axis=-1), B_w_gate, B_w_up, B_w_down)
    return h2
```

```python
from lay import *
def srd(g, d, b, size):
    g(f"s_mov_b32 s{d}, s{b}\ns_mov_b32 s{d+1}, s{b+1}\ns_mov_b32 s{d+2}, {size}\ns_mov_b32 s{d+3}, 0x00020000")
def rnd(g, d, a):
    g(f"v_cvt_pk_bf16_f32 v{d}, v{a}, v{a}\nv_lshlrev_b32 v{d}, 16, v{d}")
STR = 80
def gemm(g, nm, MT, NWG, NTN, lda, ldb, KTOT, aoff, glu):
    BM = 64 * MT
    BO = BM * STR
    g.raw(f".globl {nm}\n.p2align 8\n.type {nm},@function\n{nm}:")
    g(f"s_cmp_ge_u32 s2, {NWG}\ns_cbranch_scc1 {nm}_end")
    g("s_load_dwordx4 s[4:7], s[0:1], 64\ns_load_dwordx4 s[20:23], s[0:1], 80\ns_load_dwordx2 s[24:25], s[0:1], 104\ns_waitcnt lgkmcnt(0)")
    srd(g, 8, 24, 0x4000000)
    if glu: srd(g, 12, 4, 2211840); srd(g, 16, 6, 2211840)
    else: srd(g, 12, 20, 2211840); srd(g, 16, 20, 2211840); srd(g, 28, 22, 2621440)
    mag = (1 << 32) // NTN + 1
    g(f"s_mov_b32 s33, {mag}\ns_mul_hi_u32 s34, s2, s33\ns_mul_i32 s35, s34, {NTN}\ns_sub_u32 s35, s2, s35")
    g("v_and_b32 v1, 63, v0\nv_lshrrev_b32 v2, 6, v0\nv_and_b32 v3, 31, v0\nv_lshrrev_b32 v4, 5, v1\nv_lshrrev_b32 v5, 1, v2\nv_and_b32 v6, 1, v2")
    g(f"s_mul_i32 s36, s34, {BM*lda*2}\ns_add_u32 s36, s36, {aoff}")
    for i in range(MT):
        g(f"v_add_u32 v7, {256*i}, v0\nv_lshrrev_b32 v8, 2, v7\nv_and_b32 v7, 3, v7\nv_mul_u32_u24 v{10+i}, {lda*2}, v8\nv_lshl_add_u32 v{10+i}, v7, 4, v{10+i}\nv_mul_u32_u24 v{12+i}, {STR}, v8\nv_lshl_add_u32 v{12+i}, v7, 4, v{12+i}")
    g(f"v_lshrrev_b32 v7, 3, v0\nv_and_b32 v8, 7, v0\nv_mul_u32_u24 v14, {ldb*2}, v7\nv_lshl_add_u32 v14, v8, 4, v14\nv_mul_u32_u24 v15, {8*STR}, v8\nv_lshl_add_u32 v15, v7, 1, v15\nv_add_u32 v15, {BO}, v15")
    g(f"s_mul_i32 s37, s35, {128 if glu else 256}")
    if glu: g("s_mov_b32 s38, s37")
    else: g("s_add_u32 s38, s37, 128")
    g(f"v_mul_u32_u24 v16, {32*MT*STR}, v5\nv_mul_u32_u24 v7, {STR}, v3\nv_add_u32 v16, v16, v7\nv_lshl_add_u32 v16, v4, 4, v16")
    if glu: g(f"v_mul_u32_u24 v17, {32*STR}, v6")
    else: g(f"v_mul_u32_u24 v17, {64*STR}, v6")
    g(f"v_add_u32 v17, v17, v7\nv_lshl_add_u32 v17, v4, 4, v17\nv_add_u32 v17, {BO}, v17")
    NTO = 64 * STR if glu else 32 * STR
    ACC = 64
    for r in range(MT * 32): g(f"v_mov_b32 v{ACC+r}, 0")
    g("s_mov_b32 s39, 0")
    def loads():
        for i in range(MT): g(f"buffer_load_dwordx4 v[{20+4*i}:{23+4*i}], v{10+i}, s[8:11], s36 offen")
        g("buffer_load_dwordx4 v[28:31], v14, s[12:15], s37 offen\nbuffer_load_dwordx4 v[32:35], v14, s[16:19], s38 offen")
        g(f"s_add_u32 s36, s36, 64\ns_add_u32 s37, s37, {32*ldb*2}\ns_add_u32 s38, s38, {32*ldb*2}")
    loads()
    g.lab(f"{nm}_loop")
    g("s_waitcnt vmcnt(0)\ns_barrier")
    for i in range(MT): g(f"ds_write_b128 v{12+i}, v[{20+4*i}:{23+4*i}]")
    for h in range(2):
        for q in range(8):
            op = "ds_write_b16" if q % 2 == 0 else "ds_write_b16_d16_hi"
            g(f"{op} v15, v{28+4*h+q//2} offset:{(64*h+q)*STR}")
    g(f"s_waitcnt lgkmcnt(0)\ns_barrier\ns_add_u32 s39, s39, 32\ns_cmp_ge_u32 s39, {KTOT}\ns_cbranch_scc1 {nm}_nold")
    loads()
    g.lab(f"{nm}_nold")
    for ks in range(2):
        for m in range(MT): g(f"ds_read_b128 v[{36+4*m}:{39+4*m}], v16 offset:{m*32*STR+ks*32}")
        for n in range(2): g(f"ds_read_b128 v[{44+4*n}:{47+4*n}], v17 offset:{n*NTO+ks*32}")
        g("s_waitcnt lgkmcnt(0)")
        for m in range(MT):
            for n in range(2):
                a = ACC + (m * 2 + n) * 16
                g(f"v_mfma_f32_32x32x16_bf16 v[{a}:{a+15}], v[{36+4*m}:{39+4*m}], v[{44+4*n}:{47+4*n}], v[{a}:{a+15}]")
        g("s_nop 7\ns_nop 3")
    g(f"s_cmp_lt_u32 s39, {KTOT}\ns_cbranch_scc1 {nm}_loop\ns_nop 15")
    return ACC
def k4(g):
    nm = "gemm1_kernel"
    ACC = gemm(g, nm, 2, 432, 27, 640, 1728, 640, WS_A2, True)
    g(f"s_mul_i32 s36, s34, {128*3456}\ns_lshl_b32 s37, s35, 7\ns_add_u32 s36, s36, s37\ns_add_u32 s36, s36, {WS_HM}")
    g("v_lshlrev_b32 v7, 6, v5\nv_lshl_add_u32 v7, v4, 2, v7\nv_mul_u32_u24 v7, 3456, v7\nv_lshl_add_u32 v8, v6, 5, v3\nv_lshl_add_u32 v7, v8, 1, v7")
    for m in range(2):
        for r in range(16):
            a = ACC + m * 32 + r
            rnd(g, 20, a); rnd(g, 21, a + 16)
            g("v_mul_f32 v22, v20, v20\nv_mul_f32 v22, v22, v20\nv_mov_b32 v23, 0x3d372713\nv_fma_f32 v22, v22, v23, v20\nv_mul_f32 v22, 0x40135761, v22\nv_exp_f32 v22, v22\ns_nop 0\nv_add_f32 v22, 1.0, v22\nv_rcp_f32 v22, v22\ns_nop 0\nv_fma_f32 v22, v22, -2.0, 2.0\nv_mul_f32 v22, v22, v20\nv_mul_f32 v22, 0.5, v22")
            rnd(g, 22, 22)
            g("v_mul_f32 v22, v22, v21\nv_cvt_pk_bf16_f32 v22, v22, v22")
            ro = m * 32 + (r // 4) * 8 + r % 4
            g(f"s_add_u32 s37, s36, {ro*3456}\nbuffer_store_short v22, v7, s[8:11], s37 offen")
    g.lab(nm + "_end"); g("s_endpgm")
    return (nm, (432, 1, 1), (256, 1, 1), (128 + 128) * STR, 128)
def k5(g):
    nm = "gemm2_kernel"
    ACC = gemm(g, nm, 1, 160, 5, 1728, 640, 1728, WS_HM, False)
    g(f"s_mul_i32 s36, s34, {64*1280}\ns_lshl_b32 s37, s35, 8\ns_add_u32 s36, s36, s37\ns_add_u32 s38, s36, {WS_H}")
    g("v_lshlrev_b32 v7, 5, v5\nv_lshl_add_u32 v7, v4, 2, v7\nv_mul_u32_u24 v7, 1280, v7\nv_lshl_add_u32 v8, v6, 6, v3\nv_lshl_add_u32 v7, v8, 1, v7")
    for n in range(2):
        for r in range(16):
            a = ACC + n * 16 + r
            ro = ((r // 4) * 8 + r % 4) * 1280 + n * 64
            g(f"s_add_u32 s37, s38, {ro}\nbuffer_load_ushort v21, v7, s[8:11], s37 offen")
            rnd(g, 20, a)
            g(f"s_waitcnt vmcnt(0)\nv_lshlrev_b32 v21, 16, v21\nv_add_f32 v20, v20, v21\nv_cvt_pk_bf16_f32 v20, v20, v20\ns_add_u32 s37, s36, {ro}\nbuffer_store_short v20, v7, s[28:31], s37 offen")
    g.lab(nm + "_end"); g("s_endpgm")
    return (nm, (160, 1, 1), (256, 1, 1), (64 + 128) * STR, 96)
```

```python
import sys
from lay import *
NAME = "sequential_preLN__ssm_conv_s4d__glu_gated_geglu__prompt"
class G:
    def __init__(s): s.l = []
    def __call__(s, x):
        for ln in x.strip().split("\n"):
            if ln.strip().startswith("v_cndmask"): s.l.append("    s_nop 1")
            s.l.append("    " + ln.strip())
    def lab(s, x): s.l.append(x + ":")
    def raw(s, x): s.l.append(x)
def srd(g, d, b, size):
    g(f"s_mov_b32 s{d}, s{b}\ns_mov_b32 s{d+1}, s{b+1}\ns_mov_b32 s{d+2}, {size}\ns_mov_b32 s{d+3}, 0x00020000")
def rnd(g, d, a):
    g(f"v_cvt_pk_bf16_f32 v{d}, v{a}, v{a}\nv_lshlrev_b32 v{d}, 16, v{d}")
def ln_rows(g, RAW, S, T, PA):
    TM = S + 8
    def reduce():
        for hop in range(6):
            for r in range(8): g(f"ds_bpermute_b32 v{TM+r}, v{PA+hop}, v{S+r}")
            g("s_waitcnt lgkmcnt(0)")
            for r in range(8): g(f"v_add_f32 v{S+r}, v{S+r}, v{TM+r}")
    for r in range(8):
        g(f"v_mov_b32 v{S+r}, 0")
        for j in range(5):
            w = RAW + r * 5 + j
            g(f"v_lshlrev_b32 v{T}, 16, v{w}\nv_and_b32 v{T+1}, 0xffff0000, v{w}\nv_add_f32 v{S+r}, v{S+r}, v{T}\nv_add_f32 v{S+r}, v{S+r}, v{T+1}")
    reduce()
    MEAN = T + 4
    for r in range(8):
        g(f"v_mul_f32 v{MEAN+r}, 0x3acccccd, v{S+r}")
        g(f"v_mov_b32 v{S+r}, 0")
        for j in range(5):
            w = RAW + r * 5 + j
            g(f"v_lshlrev_b32 v{T}, 16, v{w}\nv_and_b32 v{T+1}, 0xffff0000, v{w}\nv_sub_f32 v{T}, v{T}, v{MEAN+r}\nv_sub_f32 v{T+1}, v{T+1}, v{MEAN+r}\nv_fmac_f32 v{S+r}, v{T}, v{T}\nv_fmac_f32 v{S+r}, v{T+1}, v{T+1}")
    reduce()
    SQ = MEAN + 8; RC = SQ + 8
    for r in range(8):
        g(f"v_mul_f32 v{T}, 0x3acccccd, v{S+r}")
        rnd(g, T, T)
        g(f"v_add_f32 v{T}, 0x3727c5ac, v{T}")
        rnd(g, T, T)
        g(f"v_sqrt_f32 v{T}, v{T}\ns_nop 0")
        rnd(g, SQ + r, T)
        g(f"v_rcp_f32 v{RC+r}, v{SQ+r}")
        rnd(g, MEAN + r, MEAN + r)
    return MEAN, SQ, RC
def ln_norm(g, w, dst, MEAN, SQ, RC, T):
    g(f"v_lshlrev_b32 v{T}, 16, v{w}\nv_and_b32 v{T+1}, 0xffff0000, v{w}\nv_sub_f32 v{T}, v{T}, v{MEAN}\nv_sub_f32 v{T+1}, v{T+1}, v{MEAN}")
    g(f"v_cvt_pk_bf16_f32 v{T+2}, v{T}, v{T+1}\nv_lshlrev_b32 v{T}, 16, v{T+2}\nv_and_b32 v{T+1}, 0xffff0000, v{T+2}")
    for k in (0, 1):
        g(f"v_mul_f32 v{T+2}, v{T+k}, v{RC}\nv_fma_f32 v{T+3}, -v{T+2}, v{SQ}, v{T+k}\nv_fma_f32 v{T+k}, v{T+3}, v{RC}, v{T+2}")
    g(f"v_cvt_pk_bf16_f32 v{dst}, v{T}, v{T+1}")
def head(g, name):
    g.raw(f".globl {name}\n.p2align 8\n.type {name},@function\n{name}:")
def desc(name, vg, sg=102):
    acc = (vg + 3) // 4 * 4
    return f""".p2align 6
.amdhsa_kernel {name}
  .amdhsa_next_free_vgpr {vg}
  .amdhsa_next_free_sgpr {sg}
  .amdhsa_accum_offset {acc}
  .amdhsa_group_segment_fixed_size 0
  .amdhsa_kernarg_size 112
  .amdhsa_user_sgpr_count 2
  .amdhsa_user_sgpr_kernarg_segment_ptr 1
  .amdhsa_system_sgpr_workgroup_id_x 1
.end_amdhsa_kernel
"""
def bperm_addrs(g, PA, lane):
    for k in range(6): g(f"v_xor_b32 v{PA+k}, {1<<k}, v{lane}\nv_lshlrev_b32 v{PA+k}, 2, v{PA+k}")

def k1(g):
    nm = "ln1_kernel"; head(g, nm)
    g("s_cmp_ge_u32 s2, 64\ns_cbranch_scc1 ln1_end")
    g("s_load_dwordx2 s[4:5], s[0:1], 0\ns_load_dwordx2 s[6:7], s[0:1], 104\ns_waitcnt lgkmcnt(0)")
    srd(g, 8, 4, 2621440); srd(g, 12, 6, 0x4000000)
    g("v_and_b32 v1, 63, v0\nv_lshrrev_b32 v2, 6, v0")
    bperm_addrs(g, 4, 1)
    g("s_mul_i32 s16, s2, 40960\nv_mul_u32_u24 v3, 10240, v2\nv_lshl_add_u32 v3, v1, 2, v3")
    for r in range(8):
        g(f"s_add_u32 s17, s16, {r*1280}")
        for j in range(5): g(f"buffer_load_dword v{16+r*5+j}, v3, s[8:11], s17 offen offset:{j*256}")
    g("s_waitcnt vmcnt(0)")
    MEAN, SQ, RC = ln_rows(g, 16, 56, 72, 4)
    g("v_lshlrev_b32 v10, 7, v1\nv_lshl_add_u32 v10, v2, 4, v10\nv_add_u32 v11, 40960, v10")
    for r in range(8):
        for j in range(5):
            w = 16 + r * 5 + j
            ln_norm(g, w, 12, MEAN + r, SQ + r, RC + r, 72)
            o = j * 8192 + r * 2
            g(f"ds_write_b16 v10, v12 offset:{o}\nds_write_b16_d16_hi v10, v12 offset:{o+64}\nds_write_b16 v11, v{w} offset:{o}\nds_write_b16_d16_hi v11, v{w} offset:{o+64}")
    g("s_waitcnt lgkmcnt(0)\ns_barrier")
    g("s_lshl_b32 s17, s2, 6")
    for i in range(10):
        g(f"v_add_u32 v12, {256*i}, v0\nv_lshlrev_b32 v13, 4, v12\nv_lshrrev_b32 v14, 2, v12\nv_lshlrev_b32 v14, 12, v14\nv_and_b32 v15, 3, v12\nv_lshl_add_u32 v14, v15, 4, v14")
        g("ds_read_b128 v[16:19], v13\nds_read_b128 v[20:23], v13 offset:40960\ns_waitcnt lgkmcnt(0)")
        g(f"buffer_store_dwordx4 v[16:19], v14, s[12:15], s17 offen\nv_add_u32 v14, {WS_XT}, v14\nbuffer_store_dwordx4 v[20:23], v14, s[12:15], s17 offen\ns_nop 1")
    g.lab("ln1_end"); g("s_endpgm")
    return (nm, (64, 1, 1), (256, 1, 1), 81920, 104)

def k3(g):
    nm = "ln2_kernel"; head(g, nm)
    g("s_cmp_ge_u32 s2, 64\ns_cbranch_scc1 ln2_end")
    g("s_load_dwordx2 s[6:7], s[0:1], 104\ns_waitcnt lgkmcnt(0)")
    srd(g, 12, 6, 0x4000000)
    g("v_and_b32 v1, 63, v0\nv_lshrrev_b32 v2, 6, v0")
    bperm_addrs(g, 4, 1)
    g(f"s_lshl_b32 s17, s2, 6\ns_add_u32 s17, s17, {WS_HT}")
    for i in range(10):
        g(f"v_add_u32 v12, {256*i}, v0\nv_lshrrev_b32 v14, 2, v12\nv_lshlrev_b32 v13, 1, v14\nv_lshlrev_b32 v14, 12, v14\nv_and_b32 v15, 3, v12\nv_lshl_add_u32 v14, v15, 4, v14")
        g("buffer_load_dwordx4 v[16:19], v14, s[12:15], s17 offen")
        g("v_mul_u32_u24 v15, 10240, v15\nv_add_u32 v13, v13, v15\ns_waitcnt vmcnt(0)")
        for q in range(4):
            g(f"ds_write_b16 v13, v{16+q} offset:{q*2560}\nds_write_b16_d16_hi v13, v{16+q} offset:{q*2560+1280}")
    g("s_waitcnt lgkmcnt(0)\ns_barrier")
    g("v_mul_u32_u24 v3, 10240, v2\nv_lshl_add_u32 v3, v1, 2, v3")
    for r in range(8):
        for j in range(5): g(f"ds_read_b32 v{16+r*5+j}, v3 offset:{r*1280+j*256}")
    g("s_waitcnt lgkmcnt(0)")
    MEAN, SQ, RC = ln_rows(g, 16, 56, 72, 4)
    g(f"s_mul_i32 s16, s2, 40960")
    for r in range(8):
        g(f"s_add_u32 s17, s16, {r*1280+WS_H}\ns_add_u32 s18, s16, {r*1280+WS_A2}")
        for j in range(5):
            w = 16 + r * 5 + j
            ln_norm(g, w, 12, MEAN + r, SQ + r, RC + r, 72)
            g(f"buffer_store_dword v{w}, v3, s[12:15], s17 offen offset:{j*256}\nbuffer_store_dword v12, v3, s[12:15], s18 offen offset:{j*256}")
    g.lab("ln2_end"); g("s_endpgm")
    return (nm, (64, 1, 1), (256, 1, 1), 40960, 104)

RH = 0
RL = 4736
UB = 9472
USTR = 4128
ZB = UB + 8 * USTR
YB = ZB + 512
KT = YB + 8192
LDS2 = KT + 4096
def k2(g):
    nm = "conv_kernel"; head(g, nm)
    g("s_cmp_ge_u32 s2, 640\ns_cbranch_scc1 conv_end")
    g("s_load_dwordx4 s[4:7], s[0:1], 8\ns_load_dwordx4 s[20:23], s[0:1], 24\ns_load_dwordx4 s[24:27], s[0:1], 40\ns_load_dwordx2 s[28:29], s[0:1], 104\ns_waitcnt lgkmcnt(0)")
    srd(g, 8, 4, 163840); srd(g, 12, 6, 163840); srd(g, 16, 20, 163840); srd(g, 32, 22, 163840)
    srd(g, 36, 24, 1280); srd(g, 40, 26, 1280); srd(g, 44, 28, 0x4000000)
    g("v_and_b32 v1, 63, v0\nv_lshrrev_b32 v2, 6, v0\nv_and_b32 v3, 31, v0\nv_lshrrev_b32 v4, 5, v1")
    g("v_mov_b32 v10, 0\nv_mov_b32 v11, 0\nv_mov_b32 v12, 0\nv_mov_b32 v13, 0\nv_lshlrev_b32 v14, 4, v0")
    g(f"ds_write_b128 v14, v[10:13] offset:{YB}\nds_write_b128 v14, v[10:13] offset:{YB+4096}")
    g(f"v_cmp_gt_u32 vcc, 32, v0\ns_and_saveexec_b64 s[48:49], vcc\nds_write_b128 v14, v[10:13] offset:{ZB}\ns_mov_b64 exec, s[48:49]")
    g(f"v_lshlrev_b32 v14, 1, v0\nds_write_b16 v14, v10 offset:{RH+4096}\nds_write_b16 v14, v10 offset:{RL+4096}")
    g(f"v_cmp_gt_u32 vcc, 8, v0\ns_and_saveexec_b64 s[48:49], vcc\nds_write_b16 v14, v10 offset:{RH+4096+512}\nds_write_b16 v14, v10 offset:{RL+4096+512}\ns_mov_b64 exec, s[48:49]")
    g(f"v_cmp_eq_u32 vcc, 0, v0\ns_and_saveexec_b64 s[48:49], vcc\nds_write_b16 v14, v10 offset:{RH}\nds_write_b16 v14, v10 offset:{RL}\ns_mov_b64 exec, s[48:49]")
    g("v_lshl_add_u32 v10, v2, 5, v3\nv_lshlrev_b32 v10, 1, v10\ns_lshl_b32 s30, s2, 8\ns_lshl_b32 s31, s2, 1\nv_mov_b32 v11, 0")
    g("buffer_load_ushort v12, v10, s[8:11], s30 offen\nbuffer_load_ushort v13, v10, s[12:15], s30 offen\nbuffer_load_ushort v14, v10, s[16:19], s30 offen\nbuffer_load_ushort v15, v10, s[32:35], s30 offen")
    g("buffer_load_ushort v16, v11, s[36:39], s31 offen\nbuffer_load_ushort v17, v11, s[40:43], s31 offen\ns_waitcnt vmcnt(0)")
    for v in range(12, 18): g(f"v_lshlrev_b32 v{v}, 16, v{v}")
    g("v_mul_f32 v16, 0x3fb8aa3b, v16\nv_exp_f32 v16, v16\nv_mul_f32 v12, 0x3fb8aa3b, v12\nv_exp_f32 v12, v12\ns_nop 0")
    rnd(g, 16, 16); rnd(g, 12, 12)
    g("v_mul_f32 v12, v12, v16\nv_mul_f32 v12, 0xbfb8aa3b, v12\nv_mul_f32 v13, v13, v16\nv_mul_f32 v13, 0.15915494, v13\nv_mul_f32 v14, v14, v16\nv_mul_f32 v15, v15, v16")
    g("v_mov_b32 v20, v3")
    g("v_subrev_u32 v24, 8, v3\nv_lshlrev_b32 v24, 1, v24\nv_add_u32 v24, 256, v24\nv_cmp_le_u32 vcc, 8, v3\nv_cndmask_b32 v20, v20, v24, vcc")
    g("v_subrev_u32 v24, 12, v3\nv_and_b32 v25, 1, v24\nv_lshlrev_b32 v25, 2, v25\nv_lshrrev_b32 v24, 1, v24\nv_lshl_add_u32 v24, v24, 8, v25\nv_add_u32 v24, 512, v24\nv_cmp_le_u32 vcc, 12, v3\nv_cndmask_b32 v20, v20, v24, vcc")
    g("v_subrev_u32 v24, 16, v3\nv_lshlrev_b32 v24, 8, v24\nv_add_u32 v24, 1024, v24\nv_cmp_le_u32 vcc, 16, v3\nv_cndmask_b32 v20, v20, v24, vcc")
    g("v_cmp_lt_u32 vcc, 20, v3\nv_cndmask_b32 v20, v20, 0, vcc")
    g("v_cvt_f32_u32 v20, v20\nv_lshlrev_b32 v21, 3, v3\nv_cvt_f32_u32 v21, v21\nv_cvt_f32_u32 v22, v4\nv_mul_f32 v22, 0.25, v22\nv_sub_f32 v23, 0, v22")
    for r in range(16): g(f"v_mov_b32 v{32+r}, 0")
    for n in range(32):
        g(f"v_readlane_b32 s50, v12, {n}\nv_readlane_b32 s51, v13, {n}\nv_readlane_b32 s52, v14, {n}\nv_readlane_b32 s53, v15, {n}\ns_nop 1")
        g("v_mul_f32 v24, s50, v20\nv_exp_f32 v24, v24\nv_fma_f32 v25, s51, v20, v22\nv_fract_f32 v25, v25\nv_cos_f32 v26, v25\nv_sin_f32 v27, v25")
        g("v_mul_f32 v28, s50, v21\nv_exp_f32 v28, v28\nv_fma_f32 v29, s51, v21, v23\nv_fract_f32 v29, v29\nv_cos_f32 v29, v29")
        g("v_mul_f32 v26, s52, v26\nv_fma_f32 v26, -s53, v27, v26\nv_mul_f32 v26, v26, v24\nv_mul_f32 v28, v28, v29\ns_nop 1")
        g("v_mfma_f32_32x32x2_f32 v[32:47], v26, v28, v[32:47]")
    g("s_nop 15\ns_nop 7")
    g("v_lshlrev_b32 v24, 12, v2\nv_lshl_add_u32 v24, v4, 9, v24\nv_lshl_add_u32 v24, v3, 2, v24")
    for r in range(16): g(f"ds_write_b32 v24, v{32+r} offset:{UB + ((r//4)*8 + r%4)*128}")
    g("s_waitcnt lgkmcnt(0)\ns_barrier")
    g("v_lshlrev_b32 v24, 2, v0")
    for i in range(4):
        for w in range(4): g(f"ds_read_b32 v{32+w}, v24 offset:{UB + w*4096 + i*1024}")
        g("s_waitcnt lgkmcnt(0)\nv_add_f32 v32, v32, v33\nv_add_f32 v34, v34, v35\nv_add_f32 v32, v32, v34\nv_add_f32 v32, v32, v32")
        g(f"ds_write_b32 v24, v32 offset:{KT + i*1024}")
    g("s_waitcnt lgkmcnt(0)\ns_barrier")
    for i in range(8):
        s = 0 if i == 0 else (1 if i == 1 else (2 if i < 4 else 3))
        g(f"v_add_u32 v24, {256*i}, v0")
        if s == 0:
            g("v_lshrrev_b32 v25, 3, v24\nv_and_b32 v26, 7, v24\nv_lshl_add_u32 v25, v26, 5, v25")
        else:
            g(f"v_lshrrev_b32 v25, {s}, v24\nv_and_b32 v25, 1, v25\nv_add3_u32 v25, v24, v25, {(1<<(s-1))-1}\nv_lshrrev_b32 v25, {s}, v25\nv_lshlrev_b32 v25, {s}, v25")
            if s == 1:
                g("v_subrev_u32 v26, 256, v25\nv_lshrrev_b32 v27, 3, v26\nv_and_b32 v26, 7, v26\nv_lshrrev_b32 v26, 1, v26\nv_add_u32 v26, 8, v26\nv_lshl_add_u32 v27, v26, 5, v27")
                g("v_cmp_eq_u32 vcc, 512, v25\nv_mov_b32 v26, 384\nv_cndmask_b32 v25, v27, v26, vcc")
            elif s == 2:
                g("v_subrev_u32 v26, 512, v25\nv_lshrrev_b32 v28, 8, v26\nv_and_b32 v26, 255, v26\nv_lshrrev_b32 v27, 3, v26\nv_and_b32 v26, 7, v26\nv_lshrrev_b32 v26, 2, v26\nv_lshl_add_u32 v26, v28, 1, v26\nv_add_u32 v26, 12, v26\nv_lshl_add_u32 v27, v26, 5, v27")
                g("v_mov_b32 v28, 1024\nv_cmp_eq_u32 vcc, v28, v25\nv_mov_b32 v26, 512\nv_cndmask_b32 v25, v27, v26, vcc")
            else:
                g("v_subrev_u32 v26, 1024, v25\nv_lshrrev_b32 v28, 8, v26\nv_and_b32 v26, 255, v26\nv_lshrrev_b32 v27, 3, v26\nv_add_u32 v26, 16, v28\nv_lshl_add_u32 v25, v26, 5, v27")
        g(f"v_lshlrev_b32 v25, 2, v25\nds_read_b32 v26, v25 offset:{KT}\nv_sub_u32 v24, 2047, v24\nv_lshlrev_b32 v24, 1, v24\ns_waitcnt lgkmcnt(0)")
        rnd(g, 27, 26)
        g(f"v_sub_f32 v28, v26, v27\nv_cvt_pk_bf16_f32 v28, v28, v28\nds_write_b16_d16_hi v24, v27 offset:{RH}\nds_write_b16 v24, v28 offset:{RL}")
    g("s_waitcnt lgkmcnt(0)\ns_barrier")
    g(f"s_lshl_b32 s30, s2, 12\nv_lshlrev_b32 v24, 4, v0\nbuffer_load_dwordx4 v[28:31], v24, s[44:47], s30 offen offset:{0}\ns_add_u32 s31, s30, {WS_XT}\nbuffer_load_dwordx4 v[100:103], v24, s[44:47], s31 offen\ns_waitcnt vmcnt(1)")
    for b in range(8):
        for q in range(8):
            op = "ds_write_b16" if q % 2 == 0 else "ds_write_b16_d16_hi"
            g(f"{op} v24, v{28+q//2} offset:{UB + b*USTR + (q+7-b)*2}")
    g("v_mov_b32 v25, 0\nv_lshlrev_b32 v26, 1, v0")
    for b in range(7):
        g(f"v_cmp_gt_u32 vcc, {7-b}, v0\ns_and_saveexec_b64 s[48:49], vcc\nds_write_b16 v26, v25 offset:{UB + b*USTR}\ns_mov_b64 exec, s[48:49]")
    g("s_mov_b64 exec, s[48:49]\ns_waitcnt lgkmcnt(0)\ns_barrier")
    g("v_sub_u32 v24, v4, v3\nv_lshlrev_b32 v24, 4, v24\nv_lshl_add_u32 v24, v2, 7, v24\nv_add_u32 v24, 4080, v24")
    g(f"v_and_b32 v26, 7, v3\nv_mul_u32_u24 v26, {USTR}, v26\nv_lshrrev_b32 v27, 3, v3\nv_lshl_add_u32 v26, v27, 9, v26\nv_lshl_add_u32 v26, v4, 4, v26\nv_lshl_add_u32 v26, v2, 7, v26\nv_add_u32 v26, {UB}, v26")
    g(f"v_lshlrev_b32 v28, 4, v4\nv_lshl_add_u32 v28, v2, 7, v28\nv_add_u32 v28, {ZB}, v28")
    for r in range(32): g(f"v_mov_b32 v{32+r}, 0")
    for m in range(8):
        g(f"v_subrev_u32 v29, {512*m}, v24")
        for c in range(4): g(f"ds_read_b128 v[{64+c*4}:{67+c*4}], v29 offset:{RH+c*32}\nds_read_b128 v[{80+c*4}:{83+c*4}], v29 offset:{RL+c*32}")
        for t in range(2):
            if t == 0 and m >= 4: continue
            g(f"v_add_u32 v30, {2048*t - 512*m}, v26\nv_add_u32 v31, {4*t}, v27\nv_cmp_le_u32 vcc, {m}, v31\nv_cndmask_b32 v30, v28, v30, vcc")
            for c in range(4): g(f"ds_read_b128 v[{104+t*16+c*4}:{107+t*16+c*4}], v30 offset:{c*32}")
        g("s_waitcnt lgkmcnt(0)")
        for t in range(2):
            if t == 0 and m >= 4: continue
            for c in range(4):
                g(f"v_mfma_f32_32x32x16_bf16 v[{32+t*16}:{47+t*16}], v[{64+c*4}:{67+c*4}], v[{104+t*16+c*4}:{107+t*16+c*4}], v[{32+t*16}:{47+t*16}]")
                g(f"v_mfma_f32_32x32x16_bf16 v[{32+t*16}:{47+t*16}], v[{80+c*4}:{83+c*4}], v[{104+t*16+c*4}:{107+t*16+c*4}], v[{32+t*16}:{47+t*16}]")
        g("s_nop 7\ns_nop 7")
    g("s_nop 15")
    g("v_and_b32 v29, 7, v3\nv_lshlrev_b32 v29, 2, v29\nv_lshl_add_u32 v29, v27, 10, v29\nv_lshl_add_u32 v29, v4, 7, v29")
    for t in range(2):
        for r in range(16): g(f"ds_add_f32 v29, v{32+t*16+r} offset:{YB + t*4096 + ((r//4)*8 + r%4)*32}")
    g("s_waitcnt lgkmcnt(0)\ns_barrier")
    g(f"v_lshlrev_b32 v24, 5, v0\nds_read_b128 v[32:35], v24 offset:{YB}\nds_read_b128 v[36:39], v24 offset:{YB+16}\nv_lshlrev_b32 v24, 4, v0\nds_read_b128 v[28:31], v24 offset:{UB+7*USTR}\ns_waitcnt vmcnt(0) lgkmcnt(0)")
    for q in range(8):
        sh = "v_lshlrev_b32 v{d}, 16, v{s}" if q % 2 == 0 else "v_and_b32 v{d}, 0xffff0000, v{s}"
        g(sh.format(d=40, s=28 + q // 2)); g(sh.format(d=41, s=100 + q // 2))
        g("v_mul_f32 v40, v40, v17"); rnd(g, 40, 40); rnd(g, 42, 32 + q)
        g("v_add_f32 v40, v40, v42"); rnd(g, 40, 40)
        g(f"v_add_f32 v{44+q}, v41, v40")
    for q in range(4): g(f"v_cvt_pk_bf16_f32 v{52+q}, v{44+2*q}, v{45+2*q}")
    g(f"s_add_u32 s31, s30, {WS_HT}\nbuffer_store_dwordx4 v[52:55], v24, s[44:47], s31 offen")
    g.lab("conv_end"); g("s_endpgm")
    return (nm, (640, 1, 1), (256, 1, 1), LDS2, 136)

def main():
    g = G()
    ks = []
    import gemm
    for f in (k1, k2, k3, gemm.k4, gemm.k5):
        ks.append(f(g))
    hdr = open(f"cdna_kernels/{NAME}.s.ref").read().split("; Override launch")[0]
    out = hdr
    for nm, gr, bl, lds, vg in ks:
        out += f"; @launch kernel={nm} grid=({gr[0]},{gr[1]},{gr[2]}) block=({bl[0]},{bl[1]},{bl[2]}) lds={lds}\n"
    out += '.amdgcn_target "amdgcn-amd-amdhsa--gfx950"\n.text\n' + "\n".join(g.l) + '\n.section .rodata,"a"\n'
    for nm, gr, bl, lds, vg in ks: out += desc(nm, vg)
    open(f"cdna_kernels/{NAME}.s", "w").write(out)
main()
```

```python
from lay import *
def srd(g, d, b, size):
    g(f"s_mov_b32 s{d}, s{b}\ns_mov_b32 s{d+1}, s{b+1}\ns_mov_b32 s{d+2}, {size}\ns_mov_b32 s{d+3}, 0x00020000")
def rnd(g, d, a):
    g(f"v_cvt_pk_bf16_f32 v{d}, v{a}, v{a}\nv_lshlrev_b32 v{d}, 16, v{d}")
STR = 144
def gemm(g, nm, MT, NWG, NTN, lda, KTOT, aoff, glu):
    BM = 64 * MT
    BO = BM * STR
    STG = (BM + 128) * STR
    g.raw(f".globl {nm}\n.p2align 8\n.type {nm},@function\n{nm}:")
    g(f"s_cmp_ge_u32 s2, {NWG}\ns_cbranch_scc1 {nm}_end")
    g("s_load_dwordx2 s[22:23], s[0:1], 88\ns_load_dwordx2 s[24:25], s[0:1], 104\ns_waitcnt lgkmcnt(0)")
    srd(g, 8, 24, 0x4000000); srd(g, 28, 22, 2621440)
    mag = (1 << 32) // NTN + 1
    g(f"s_mov_b32 s33, {mag}\ns_mul_hi_u32 s34, s2, s33\ns_mul_i32 s35, s34, {NTN}\ns_sub_u32 s35, s2, s35")
    g("v_and_b32 v1, 63, v0\nv_lshrrev_b32 v2, 6, v0\nv_and_b32 v3, 31, v0\nv_lshrrev_b32 v4, 5, v1\nv_lshrrev_b32 v5, 1, v2\nv_and_b32 v6, 1, v2")
    g(f"s_mul_i32 s36, s34, {BM*lda*2}\ns_add_u32 s36, s36, {aoff}")
    g(f"v_lshrrev_b32 v8, 3, v0\nv_and_b32 v7, 7, v0\nv_mul_u32_u24 v10, {lda*2}, v8\nv_lshl_add_u32 v10, v7, 4, v10\nv_mul_u32_u24 v12, {STR}, v8\nv_lshl_add_u32 v12, v7, 4, v12")
    if glu: g(f"s_mul_i32 s37, s35, {64*lda*2}\ns_add_u32 s38, s37, {WS_WU}\ns_add_u32 s37, s37, {WS_WG}")
    else: g(f"s_mul_i32 s37, s35, {128*lda*2}\ns_add_u32 s37, s37, {WS_WD}\ns_add_u32 s38, s37, {64*lda*2}")
    g(f"v_mul_u32_u24 v16, {32*MT*STR}, v5\nv_mul_u32_u24 v7, {STR}, v3\nv_add_u32 v16, v16, v7\nv_lshl_add_u32 v16, v4, 4, v16")
    g(f"v_mul_u32_u24 v17, {(32 if glu else 64)*STR}, v6\nv_add_u32 v17, v17, v7\nv_lshl_add_u32 v17, v4, 4, v17\nv_add_u32 v17, {BO}, v17")
    NTO = 64 * STR if glu else 32 * STR
    ACC = 96
    g(f"v_add_u32 v13, {STG}, v12\nv_add_u32 v18, {STG}, v16\nv_add_u32 v19, {STG}, v17")
    NA = 2 * MT
    for r in range(MT * 32): g(f"v_mov_b32 v{ACC+r}, 0")
    RS = [20, 160]
    NL = NA + 4
    def loads(rs):
        R = RS[rs]
        for i in range(NA): g(f"s_add_u32 s40, s36, {i*32*lda*2}\nbuffer_load_dwordx4 v[{R+4*i}:{R+3+4*i}], v10, s[8:11], s40 offen")
        for i in range(4): g(f"s_add_u32 s40, s{37+i//2}, {(i%2)*32*lda*2}\nbuffer_load_dwordx4 v[{R+16+4*i}:{R+19+4*i}], v10, s[8:11], s40 offen")
        g("s_add_u32 s36, s36, 128\ns_add_u32 s37, s37, 128\ns_add_u32 s38, s38, 128")
    def writes(buf, rs):
        R = RS[rs]
        for i in range(NA): g(f"ds_write_b128 v{12+buf}, v[{R+4*i}:{R+3+4*i}] offset:{i*32*STR}")
        for i in range(4): g(f"ds_write_b128 v{12+buf}, v[{R+16+4*i}:{R+19+4*i}] offset:{BO+i*32*STR}")
    def compute(buf):
        def rd(ks):
            st = (ks % 2) * 16
            for m in range(MT): g(f"ds_read_b128 v[{52+st+4*m}:{55+st+4*m}], v{16+2*buf} offset:{m*32*STR+ks*32}")
            for n in range(2): g(f"ds_read_b128 v[{60+st+4*n}:{63+st+4*n}], v{17+2*buf} offset:{n*NTO+ks*32}")
        rd(0)
        for ks in range(4):
            st = (ks % 2) * 16
            if ks < 3: rd(ks + 1); g(f"s_waitcnt lgkmcnt({MT+2})")
            else: g("s_waitcnt lgkmcnt(0)")
            for m in range(MT):
                for n in range(2):
                    a = ACC + (m * 2 + n) * 16
                    g(f"v_mfma_f32_32x32x16_bf16 v[{a}:{a+15}], v[{52+st+4*m}:{55+st+4*m}], v[{60+st+4*n}:{63+st+4*n}], v[{a}:{a+15}]")
    NS = KTOT // 64
    loads(0); loads(1); g(f"s_waitcnt vmcnt({NL})"); writes(0, 0); g("s_waitcnt lgkmcnt(0)\ns_barrier")
    for sidx in range(NS):
        if sidx + 2 < NS: loads(sidx % 2)
        compute(sidx % 2)
        if sidx + 1 < NS:
            g(f"s_waitcnt vmcnt({NL if sidx + 2 < NS else 0})"); writes((sidx + 1) % 2, (sidx + 1) % 2); g("s_waitcnt lgkmcnt(0)\ns_barrier")
    g("s_nop 15\ns_nop 3")
    return ACC
def k4(g):
    nm = "gemm1_kernel"
    ACC = gemm(g, nm, 2, 432, 27, 640, 640, WS_A2, True)
    g(f"s_mul_i32 s36, s34, {128*3456}\ns_lshl_b32 s37, s35, 7\ns_add_u32 s36, s36, s37\ns_add_u32 s36, s36, {WS_HM}")
    g("v_lshlrev_b32 v7, 6, v5\nv_lshl_add_u32 v7, v4, 2, v7\nv_mul_u32_u24 v7, 3456, v7\nv_lshl_add_u32 v8, v6, 5, v3\nv_lshl_add_u32 v7, v8, 1, v7")
    for m in range(2):
        for r in range(16):
            a = ACC + m * 32 + r
            rnd(g, 20, a); rnd(g, 21, a + 16)
            g("v_mul_f32 v22, v20, v20\nv_mul_f32 v22, v22, v20\nv_mov_b32 v23, 0x3d372713\nv_fma_f32 v22, v22, v23, v20\nv_mul_f32 v22, 0x40135761, v22\nv_exp_f32 v22, v22\ns_nop 0\nv_add_f32 v22, 1.0, v22\nv_rcp_f32 v22, v22\ns_nop 0\nv_fma_f32 v22, v22, -2.0, 2.0\nv_mul_f32 v22, v22, v20\nv_mul_f32 v22, 0.5, v22")
            rnd(g, 22, 22)
            g("v_mul_f32 v22, v22, v21\nv_cvt_pk_bf16_f32 v22, v22, v22")
            ro = m * 32 + (r // 4) * 8 + r % 4
            g(f"s_add_u32 s37, s36, {ro*3456}\nbuffer_store_short v22, v7, s[8:11], s37 offen")
    g.lab(nm + "_end"); g("s_endpgm")
    return (nm, (432, 1, 1), (256, 1, 1), 2 * (128 + 128) * STR, 192)
def k5(g):
    nm = "gemm2_kernel"
    ACC = gemm(g, nm, 1, 160, 5, 1728, 1728, WS_HM, False)
    g(f"s_mul_i32 s36, s34, {64*1280}\ns_lshl_b32 s37, s35, 8\ns_add_u32 s36, s36, s37\ns_add_u32 s38, s36, {WS_H}")
    g("v_lshlrev_b32 v7, 5, v5\nv_lshl_add_u32 v7, v4, 2, v7\nv_mul_u32_u24 v7, 1280, v7\nv_lshl_add_u32 v8, v6, 6, v3\nv_lshl_add_u32 v7, v8, 1, v7")
    for n in range(2):
        for r in range(16):
            ro = ((r // 4) * 8 + r % 4) * 1280 + n * 64
            g(f"s_add_u32 s37, s38, {ro}\nbuffer_load_ushort v{20+n*16+r}, v7, s[8:11], s37 offen")
    g("s_waitcnt vmcnt(0)")
    for n in range(2):
        for r in range(16):
            a = ACC + n * 16 + r; w = 20 + n * 16 + r
            ro = ((r // 4) * 8 + r % 4) * 1280 + n * 64
            rnd(g, a, a)
            g(f"v_lshlrev_b32 v{w}, 16, v{w}\nv_add_f32 v{a}, v{a}, v{w}\nv_cvt_pk_bf16_f32 v{a}, v{a}, v{a}\ns_add_u32 s37, s36, {ro}\nbuffer_store_short v{a}, v7, s[28:31], s37 offen")
    g.lab(nm + "_end"); g("s_endpgm")
    return (nm, (160, 1, 1), (256, 1, 1), 2 * (64 + 128) * STR, 192)
```

```python
import sys
from lay import *
NAME = "sequential_preLN__ssm_conv_s4d__glu_gated_geglu__prompt"
class G:
    def __init__(s): s.l = []
    def __call__(s, x):
        for ln in x.strip().split("\n"):
            if ln.strip().startswith("v_cndmask"): s.l.append("    s_nop 1")
            s.l.append("    " + ln.strip())
    def lab(s, x): s.l.append(x + ":")
    def raw(s, x): s.l.append(x)
def srd(g, d, b, size):
    g(f"s_mov_b32 s{d}, s{b}\ns_mov_b32 s{d+1}, s{b+1}\ns_mov_b32 s{d+2}, {size}\ns_mov_b32 s{d+3}, 0x00020000")
def rnd(g, d, a):
    g(f"v_cvt_pk_bf16_f32 v{d}, v{a}, v{a}\nv_lshlrev_b32 v{d}, 16, v{d}")
def ln_rows(g, RAW, S, T, PA, NR=8):
    TM = S + 8
    def reduce():
        for hop in range(6):
            for r in range(NR): g(f"ds_bpermute_b32 v{TM+r}, v{PA+hop}, v{S+r}")
            g("s_waitcnt lgkmcnt(0)")
            for r in range(NR): g(f"v_add_f32 v{S+r}, v{S+r}, v{TM+r}")
    for r in range(NR):
        g(f"v_mov_b32 v{S+r}, 0")
        for j in range(5):
            w = RAW + r * 5 + j
            g(f"v_lshlrev_b32 v{T}, 16, v{w}\nv_and_b32 v{T+1}, 0xffff0000, v{w}\nv_add_f32 v{S+r}, v{S+r}, v{T}\nv_add_f32 v{S+r}, v{S+r}, v{T+1}")
    reduce()
    MEAN = T + 4
    for r in range(NR):
        g(f"v_mul_f32 v{MEAN+r}, 0x3acccccd, v{S+r}")
        g(f"v_mov_b32 v{S+r}, 0")
        for j in range(5):
            w = RAW + r * 5 + j
            g(f"v_lshlrev_b32 v{T}, 16, v{w}\nv_and_b32 v{T+1}, 0xffff0000, v{w}\nv_sub_f32 v{T}, v{T}, v{MEAN+r}\nv_sub_f32 v{T+1}, v{T+1}, v{MEAN+r}\nv_fmac_f32 v{S+r}, v{T}, v{T}\nv_fmac_f32 v{S+r}, v{T+1}, v{T+1}")
    reduce()
    SQ = MEAN + 8; RC = SQ + 8
    for r in range(NR):
        g(f"v_mul_f32 v{T}, 0x3acccccd, v{S+r}")
        rnd(g, T, T)
        g(f"v_add_f32 v{T}, 0x3727c5ac, v{T}")
        rnd(g, T, T)
        g(f"v_sqrt_f32 v{T}, v{T}\ns_nop 0")
        rnd(g, SQ + r, T)
        g(f"v_rcp_f32 v{RC+r}, v{SQ+r}")
        rnd(g, MEAN + r, MEAN + r)
    return MEAN, SQ, RC
def ln_norm(g, w, dst, MEAN, SQ, RC, T):
    g(f"v_lshlrev_b32 v{T}, 16, v{w}\nv_and_b32 v{T+1}, 0xffff0000, v{w}\nv_sub_f32 v{T}, v{T}, v{MEAN}\nv_sub_f32 v{T+1}, v{T+1}, v{MEAN}")
    g(f"v_cvt_pk_bf16_f32 v{T+2}, v{T}, v{T+1}\nv_lshlrev_b32 v{T}, 16, v{T+2}\nv_and_b32 v{T+1}, 0xffff0000, v{T+2}")
    for k in (0, 1):
        g(f"v_mul_f32 v{T+2}, v{T+k}, v{RC}\nv_fma_f32 v{T+3}, -v{T+2}, v{SQ}, v{T+k}\nv_fma_f32 v{T+k}, v{T+3}, v{RC}, v{T+2}")
    g(f"v_cvt_pk_bf16_f32 v{dst}, v{T}, v{T+1}")
def head(g, name):
    g.raw(f".globl {name}\n.p2align 8\n.type {name},@function\n{name}:")
def desc(name, vg, sg=102):
    acc = (vg + 3) // 4 * 4
    return f""".p2align 6
.amdhsa_kernel {name}
  .amdhsa_next_free_vgpr {vg}
  .amdhsa_next_free_sgpr {sg}
  .amdhsa_accum_offset {acc}
  .amdhsa_group_segment_fixed_size 0
  .amdhsa_kernarg_size 112
  .amdhsa_user_sgpr_count 2
  .amdhsa_user_sgpr_kernarg_segment_ptr 1
  .amdhsa_system_sgpr_workgroup_id_x 1
.end_amdhsa_kernel
"""
def bperm_addrs(g, PA, lane):
    for k in range(6): g(f"v_xor_b32 v{PA+k}, {1<<k}, v{lane}\nv_lshlrev_b32 v{PA+k}, 2, v{PA+k}")

def k1(g):
    nm = "ln1_kernel"; head(g, nm)
    g("s_cmp_ge_u32 s2, 332\ns_cbranch_scc1 ln1_end\ns_cmp_ge_u32 s2, 128\ns_cbranch_scc1 wt_start")
    g("s_load_dwordx2 s[4:5], s[0:1], 0\ns_load_dwordx2 s[6:7], s[0:1], 104\ns_waitcnt lgkmcnt(0)")
    srd(g, 8, 4, 2621440); srd(g, 12, 6, 0x4000000)
    g("v_and_b32 v1, 63, v0\nv_lshrrev_b32 v2, 6, v0")
    bperm_addrs(g, 4, 1)
    g("s_mul_i32 s16, s2, 20480\nv_mul_u32_u24 v3, 5120, v2\nv_lshl_add_u32 v3, v1, 2, v3")
    for r in range(4):
        g(f"s_add_u32 s17, s16, {r*1280}")
        for j in range(5): g(f"buffer_load_dword v{16+r*5+j}, v3, s[8:11], s17 offen offset:{j*256}")
    g("s_mov_b32 s20, 0x05040100\ns_mov_b32 s21, 0x07060302\ns_waitcnt vmcnt(0)")
    MEAN, SQ, RC = ln_rows(g, 16, 56, 72, 4, 4)
    g("v_lshlrev_b32 v10, 13, v1\nv_lshl_add_u32 v10, v2, 3, v10\ns_lshl_b32 s17, s2, 5")
    for j in range(5):
        for r in range(4): ln_norm(g, 16 + r * 5 + j, 104 + r, MEAN + r, SQ + r, RC + r, 72)
        for p in range(2):
            g(f"v_perm_b32 v{112+p}, v{105+2*p}, v{104+2*p}, s20\nv_perm_b32 v{116+p}, v{105+2*p}, v{104+2*p}, s21")
        g(f"buffer_store_dwordx2 v[112:113], v10, s[12:15], s17 offen\ns_add_u32 s18, s17, 4096\nbuffer_store_dwordx2 v[116:117], v10, s[12:15], s18 offen\ns_add_u32 s17, s17, 524288\ns_nop 1")

    g("s_endpgm")
    g.lab("wt_start")
    g("s_load_dwordx4 s[4:7], s[0:1], 64\ns_load_dwordx2 s[20:21], s[0:1], 80\ns_load_dwordx2 s[22:23], s[0:1], 104\ns_waitcnt lgkmcnt(0)")
    srd(g, 12, 22, 0x4000000)
    g("s_sub_u32 s24, s2, 128\ns_cmp_ge_u32 s24, 68\ns_cbranch_scc0 wt_g\ns_cmp_ge_u32 s24, 136\ns_cbranch_scc0 wt_u")
    mg = lambda n: (1 << 32) // n + 1
    g(f"s_sub_u32 s24, s24, 136\ns_mov_b32 s8, s20\ns_mov_b32 s9, s21\ns_mov_b32 s25, {mg(80)}\ns_mov_b32 s26, 80\ns_mov_b32 s27, 1280\ns_mov_b32 s28, 3456\ns_mov_b32 s29, {WS_WD}\ns_branch wt_go")
    g.lab("wt_g")
    g(f"s_mov_b32 s8, s4\ns_mov_b32 s9, s5\ns_mov_b32 s25, {mg(216)}\ns_mov_b32 s26, 216\ns_mov_b32 s27, 3456\ns_mov_b32 s28, 1280\ns_mov_b32 s29, {WS_WG}\ns_branch wt_go")
    g.lab("wt_u")
    g(f"s_sub_u32 s24, s24, 68\ns_mov_b32 s8, s6\ns_mov_b32 s9, s7\ns_mov_b32 s25, {mg(216)}\ns_mov_b32 s26, 216\ns_mov_b32 s27, 3456\ns_mov_b32 s28, 1280\ns_mov_b32 s29, {WS_WU}")
    g.lab("wt_go")
    g("s_mov_b32 s10, 2211840\ns_mov_b32 s11, 0x00020000\ns_lshl_b32 s24, s24, 8\nv_add_u32 v1, s24, v0\nv_cmp_gt_u32 vcc, 17280, v1\ns_and_saveexec_b64 s[30:31], vcc\ns_cbranch_execz ln1_end")
    g("v_mul_hi_u32 v2, v1, s25\nv_mul_lo_u32 v3, v2, s26\nv_sub_u32 v3, v1, v3")
    g("v_mul_lo_u32 v4, v2, s27\nv_lshlrev_b32 v4, 3, v4\nv_lshl_add_u32 v4, v3, 4, v4")
    g("v_mul_lo_u32 v5, v3, s28\nv_lshlrev_b32 v5, 3, v5\nv_lshl_add_u32 v5, v2, 4, v5\ns_mov_b32 s24, 0\ns_mov_b32 s20, 0x05040100\ns_mov_b32 s21, 0x07060302")
    for k in range(8): g(f"buffer_load_dwordx4 v[{16+4*k}:{19+4*k}], v4, s[8:11], s24 offen\ns_add_u32 s24, s24, s27")
    g("s_waitcnt vmcnt(0)")
    for j in range(8):
        for p in range(4):
            g(f"v_perm_b32 v{48+4*j+p}, v{16+4*(2*p+1)+j//2}, v{16+4*(2*p)+j//2}, s{20+j%2}")
        g(f"buffer_store_dwordx4 v[{48+4*j}:{51+4*j}], v5, s[12:15], s29 offen\ns_add_u32 s29, s29, s28")
    g.lab("ln1_end"); g("s_endpgm")
    return (nm, (332, 1, 1), (256, 1, 1), 0, 120)

def k3(g):
    nm = "ln2_kernel"; head(g, nm)
    g("s_cmp_ge_u32 s2, 128\ns_cbranch_scc1 ln2_end")
    g("s_load_dwordx2 s[4:5], s[0:1], 0\ns_load_dwordx2 s[6:7], s[0:1], 104\ns_load_dwordx2 s[20:21], s[0:1], 48\ns_waitcnt lgkmcnt(0)")
    srd(g, 8, 4, 2621440); srd(g, 12, 6, 0x4000000); srd(g, 24, 20, 1280)
    g("v_and_b32 v1, 63, v0\nv_lshrrev_b32 v2, 6, v0")
    bperm_addrs(g, 4, 1)
    g("s_mul_i32 s16, s2, 20480\nv_mul_u32_u24 v3, 5120, v2\nv_lshl_add_u32 v3, v1, 2, v3\nv_lshlrev_b32 v11, 2, v1")
    for r in range(4):
        g(f"s_add_u32 s17, s16, {r*1280}")
        for j in range(5): g(f"buffer_load_dword v{16+r*5+j}, v3, s[8:11], s17 offen offset:{j*256}")
    for j in range(5): g(f"buffer_load_dword v{160+j}, v11, s[24:27], 0 offen offset:{j*256}")
    g("s_waitcnt vmcnt(0)")
    MEAN, SQ, RC = ln_rows(g, 16, 56, 72, 4, 4)
    g(f"v_lshlrev_b32 v10, 13, v1\nv_lshl_add_u32 v10, v2, 3, v10\ns_lshl_b32 s17, s2, 5\ns_add_u32 s17, s17, {WS_HT}")
    for j in range(5):
        g("s_add_u32 s18, s17, 4096\nbuffer_load_dwordx2 v[152:153], v10, s[12:15], s17 offen\nbuffer_load_dwordx2 v[156:157], v10, s[12:15], s18 offen\ns_add_u32 s17, s17, 524288")
        for r in range(4): ln_norm(g, 16 + r * 5 + j, 144 + r, MEAN + r, SQ + r, RC + r, 72)
        g(f"v_lshlrev_b32 v12, 16, v{160+j}\nv_and_b32 v13, 0xffff0000, v{160+j}\ns_waitcnt vmcnt(0)")
        for r in range(4):
            for hh in range(2):
                sh = "v_lshlrev_b32 v{d}, 16, v{s}" if hh == 0 else "v_and_b32 v{d}, 0xffff0000, v{s}"
                shy = "v_lshlrev_b32 v{d}, 16, v{s}" if r % 2 == 0 else "v_and_b32 v{d}, 0xffff0000, v{s}"
                g(sh.format(d=72, s=144 + r)); g(sh.format(d=73, s=16 + r * 5 + j)); g(shy.format(d=74, s=152 + 4 * hh + r // 2))
                g(f"v_mul_f32 v72, v72, v{12+hh}"); rnd(g, 72, 72)
                g("v_add_f32 v72, v72, v74"); rnd(g, 72, 72)
                g(f"v_add_f32 v{14+hh}, v73, v72")
            g(f"v_cvt_pk_bf16_f32 v{104+r*5+j}, v14, v15")
    MEAN, SQ, RC = ln_rows(g, 104, 56, 72, 4, 4)
    for r in range(4):
        g(f"s_add_u32 s17, s16, {r*1280+WS_H}\ns_add_u32 s18, s16, {r*1280+WS_A2}")
        for j in range(5):
            w = 104 + r * 5 + j
            ln_norm(g, w, 12, MEAN + r, SQ + r, RC + r, 72)
            g(f"buffer_store_dword v{w}, v3, s[12:15], s17 offen offset:{j*256}\nbuffer_store_dword v12, v3, s[12:15], s18 offen offset:{j*256}")
    g.lab("ln2_end"); g("s_endpgm")
    return (nm, (128, 1, 1), (256, 1, 1), 0, 168)

RH = 0
RL = 4736
UB = 9472
USTR = 4128
ZB = UB + 8 * USTR
YB = ZB + 512
KT = YB
LDS2 = KT + 4096
def k2(g):
    nm = "conv_kernel"; head(g, nm)
    g("s_cmp_ge_u32 s2, 640\ns_cbranch_scc1 conv_end")
    g("s_load_dwordx4 s[4:7], s[0:1], 8\ns_load_dwordx4 s[20:23], s[0:1], 24\ns_load_dwordx4 s[24:27], s[0:1], 40\ns_load_dwordx2 s[28:29], s[0:1], 104\ns_waitcnt lgkmcnt(0)")
    srd(g, 8, 4, 163840); srd(g, 12, 6, 163840); srd(g, 16, 20, 163840); srd(g, 32, 22, 163840)
    srd(g, 36, 24, 1280); srd(g, 40, 26, 1280); srd(g, 44, 28, 0x4000000)
    g("v_and_b32 v1, 63, v0\nv_lshrrev_b32 v2, 6, v0\nv_and_b32 v3, 31, v0\nv_lshrrev_b32 v4, 5, v1")
    g("v_mov_b32 v10, 0\nv_mov_b32 v11, 0\nv_mov_b32 v12, 0\nv_mov_b32 v13, 0\nv_lshlrev_b32 v14, 4, v0")
    g(f"v_cmp_gt_u32 vcc, 32, v0\ns_and_saveexec_b64 s[48:49], vcc\nds_write_b128 v14, v[10:13] offset:{ZB}\ns_mov_b64 exec, s[48:49]")
    g(f"v_lshlrev_b32 v14, 1, v0\nds_write_b16 v14, v10 offset:{RH+4096}\nds_write_b16 v14, v10 offset:{RL+4096}")
    g(f"v_cmp_gt_u32 vcc, 8, v0\ns_and_saveexec_b64 s[48:49], vcc\nds_write_b16 v14, v10 offset:{RH+4096+512}\nds_write_b16 v14, v10 offset:{RL+4096+512}\ns_mov_b64 exec, s[48:49]")
    g(f"v_cmp_eq_u32 vcc, 0, v0\ns_and_saveexec_b64 s[48:49], vcc\nds_write_b16 v14, v10 offset:{RH}\nds_write_b16 v14, v10 offset:{RL}\ns_mov_b64 exec, s[48:49]")
    g("v_lshl_add_u32 v10, v2, 5, v3\nv_lshlrev_b32 v10, 1, v10\ns_lshl_b32 s30, s2, 8\ns_lshl_b32 s31, s2, 1\nv_mov_b32 v11, 0")
    g("buffer_load_ushort v12, v10, s[8:11], s30 offen\nbuffer_load_ushort v13, v10, s[12:15], s30 offen\nbuffer_load_ushort v14, v10, s[16:19], s30 offen\nbuffer_load_ushort v15, v10, s[32:35], s30 offen")
    g("buffer_load_ushort v16, v11, s[36:39], s31 offen\nbuffer_load_ushort v17, v11, s[40:43], s31 offen\ns_waitcnt vmcnt(0)")
    for v in range(12, 18): g(f"v_lshlrev_b32 v{v}, 16, v{v}")
    g("v_mul_f32 v16, 0x3fb8aa3b, v16\nv_exp_f32 v16, v16\nv_mul_f32 v12, 0x3fb8aa3b, v12\nv_exp_f32 v12, v12\ns_nop 0")
    rnd(g, 16, 16); rnd(g, 12, 12)
    g("v_mul_f32 v12, v12, v16\nv_mul_f32 v12, 0xbfb8aa3b, v12\nv_mul_f32 v13, v13, v16\nv_mul_f32 v13, 0.15915494, v13\nv_mul_f32 v14, v14, v16\nv_mul_f32 v15, v15, v16")
    g("v_mov_b32 v20, v3")
    g("v_subrev_u32 v24, 8, v3\nv_lshlrev_b32 v24, 1, v24\nv_add_u32 v24, 256, v24\nv_cmp_le_u32 vcc, 8, v3\nv_cndmask_b32 v20, v20, v24, vcc")
    g("v_subrev_u32 v24, 12, v3\nv_and_b32 v25, 1, v24\nv_lshlrev_b32 v25, 2, v25\nv_lshrrev_b32 v24, 1, v24\nv_lshl_add_u32 v24, v24, 8, v25\nv_add_u32 v24, 512, v24\nv_cmp_le_u32 vcc, 12, v3\nv_cndmask_b32 v20, v20, v24, vcc")
    g("v_subrev_u32 v24, 16, v3\nv_lshlrev_b32 v24, 8, v24\nv_add_u32 v24, 1024, v24\nv_cmp_le_u32 vcc, 16, v3\nv_cndmask_b32 v20, v20, v24, vcc")
    g("v_cmp_lt_u32 vcc, 20, v3\nv_cndmask_b32 v20, v20, 0, vcc")
    g("v_cvt_f32_u32 v20, v20\nv_lshlrev_b32 v21, 3, v3\nv_cvt_f32_u32 v21, v21\nv_cvt_f32_u32 v22, v4\nv_mul_f32 v22, 0.25, v22\nv_sub_f32 v23, 0, v22")
    for r in range(16): g(f"v_mov_b32 v{32+r}, 0")
    for n in range(0, 32, 2):
        for e in range(2):
            S = 50 + 4 * e
            g(f"v_readlane_b32 s{S}, v12, {n+e}\nv_readlane_b32 s{S+1}, v13, {n+e}\nv_readlane_b32 s{S+2}, v14, {n+e}\nv_readlane_b32 s{S+3}, v15, {n+e}")
        for e in range(2):
            S = 50 + 4 * e; V = 48 + 8 * e
            g(f"v_mul_f32 v{V}, s{S}, v20\nv_fma_f32 v{V+1}, s{S+1}, v20, v22\nv_mul_f32 v{V+4}, s{S}, v21\nv_fma_f32 v{V+5}, s{S+1}, v21, v23\nv_fract_f32 v{V+1}, v{V+1}\nv_fract_f32 v{V+5}, v{V+5}")
        for e in range(2):
            V = 48 + 8 * e
            g(f"v_exp_f32 v{V}, v{V}\nv_cos_f32 v{V+2}, v{V+1}\nv_sin_f32 v{V+3}, v{V+1}\nv_exp_f32 v{V+4}, v{V+4}\nv_cos_f32 v{V+5}, v{V+5}")
        for e in range(2):
            S = 50 + 4 * e; V = 48 + 8 * e
            g(f"v_mul_f32 v{V+2}, s{S+2}, v{V+2}\nv_fma_f32 v{V+2}, -s{S+3}, v{V+3}, v{V+2}\nv_mul_f32 v{V+2}, v{V+2}, v{V}\nv_mul_f32 v{V+4}, v{V+4}, v{V+5}")
        g("s_nop 1\nv_mfma_f32_32x32x2_f32 v[32:47], v50, v52, v[32:47]\nv_mfma_f32_32x32x2_f32 v[32:47], v58, v60, v[32:47]")
    g("s_nop 15\ns_nop 7")
    g("v_lshlrev_b32 v24, 12, v2\nv_lshl_add_u32 v24, v4, 9, v24\nv_lshl_add_u32 v24, v3, 2, v24")
    for r in range(16): g(f"ds_write_b32 v24, v{32+r} offset:{UB + ((r//4)*8 + r%4)*128}")
    g("s_waitcnt lgkmcnt(0)\ns_barrier")
    g("v_lshlrev_b32 v24, 2, v0")
    for i in range(4):
        for w in range(4): g(f"ds_read_b32 v{32+w}, v24 offset:{UB + w*4096 + i*1024}")
        g("s_waitcnt lgkmcnt(0)\nv_add_f32 v32, v32, v33\nv_add_f32 v34, v34, v35\nv_add_f32 v32, v32, v34\nv_add_f32 v32, v32, v32")
        g(f"ds_write_b32 v24, v32 offset:{KT + i*1024}")
    g("s_waitcnt lgkmcnt(0)\ns_barrier")
    for i in range(8):
        s = 0 if i == 0 else (1 if i == 1 else (2 if i < 4 else 3))
        g(f"v_add_u32 v24, {256*i}, v0")
        if s == 0:
            g("v_lshrrev_b32 v25, 3, v24\nv_and_b32 v26, 7, v24\nv_lshl_add_u32 v25, v26, 5, v25")
        else:
            g(f"v_lshrrev_b32 v25, {s}, v24\nv_and_b32 v25, 1, v25\nv_add3_u32 v25, v24, v25, {(1<<(s-1))-1}\nv_lshrrev_b32 v25, {s}, v25\nv_lshlrev_b32 v25, {s}, v25")
            if s == 1:
                g("v_subrev_u32 v26, 256, v25\nv_lshrrev_b32 v27, 3, v26\nv_and_b32 v26, 7, v26\nv_lshrrev_b32 v26, 1, v26\nv_add_u32 v26, 8, v26\nv_lshl_add_u32 v27, v26, 5, v27")
                g("v_cmp_eq_u32 vcc, 512, v25\nv_mov_b32 v26, 384\nv_cndmask_b32 v25, v27, v26, vcc")
            elif s == 2:
                g("v_subrev_u32 v26, 512, v25\nv_lshrrev_b32 v28, 8, v26\nv_and_b32 v26, 255, v26\nv_lshrrev_b32 v27, 3, v26\nv_and_b32 v26, 7, v26\nv_lshrrev_b32 v26, 2, v26\nv_lshl_add_u32 v26, v28, 1, v26\nv_add_u32 v26, 12, v26\nv_lshl_add_u32 v27, v26, 5, v27")
                g("v_mov_b32 v28, 1024\nv_cmp_eq_u32 vcc, v28, v25\nv_mov_b32 v26, 512\nv_cndmask_b32 v25, v27, v26, vcc")
            else:
                g("v_subrev_u32 v26, 1024, v25\nv_lshrrev_b32 v28, 8, v26\nv_and_b32 v26, 255, v26\nv_lshrrev_b32 v27, 3, v26\nv_add_u32 v26, 16, v28\nv_lshl_add_u32 v25, v26, 5, v27")
        g(f"v_lshlrev_b32 v25, 2, v25\nds_read_b32 v26, v25 offset:{KT}\nv_sub_u32 v24, 2047, v24\nv_lshlrev_b32 v24, 1, v24\ns_waitcnt lgkmcnt(0)")
        rnd(g, 27, 26)
        g(f"v_sub_f32 v28, v26, v27\nv_cvt_pk_bf16_f32 v28, v28, v28\nds_write_b16_d16_hi v24, v27 offset:{RH}\nds_write_b16 v24, v28 offset:{RL}")
    g("s_waitcnt lgkmcnt(0)\ns_barrier")
    g("s_lshl_b32 s30, s2, 12\nv_lshlrev_b32 v24, 4, v0\nbuffer_load_dwordx4 v[36:39], v24, s[44:47], s30 offen\nv_subrev_u32 v25, 16, v24\nv_max_i32 v25, 0, v25\nbuffer_load_dwordx4 v[32:35], v25, s[44:47], s30 offen\ns_waitcnt vmcnt(0)")
    g("v_cmp_eq_u32 vcc, 0, v0")
    for q in range(4): g(f"v_cndmask_b32 v{32+q}, v{32+q}, 0, vcc")
    for b in range(8):
        sft = 7 - b; st = 8 - sft
        for p in range(4):
            e = st + 2 * p
            if e % 2 == 0: g(f"v_mov_b32 v{40+p}, v{32+e//2}")
            else: g(f"v_alignbit_b32 v{40+p}, v{32+e//2+1}, v{32+e//2}, 16")
        g(f"ds_write_b128 v24, v[40:43] offset:{UB + b*USTR}")
    g("s_waitcnt lgkmcnt(0)\ns_barrier")
    g("v_sub_u32 v24, v4, v3\nv_lshlrev_b32 v24, 4, v24\nv_lshl_add_u32 v24, v2, 7, v24\nv_add_u32 v24, 4080, v24")
    g(f"v_and_b32 v26, 7, v3\nv_mul_u32_u24 v26, {USTR}, v26\nv_lshrrev_b32 v27, 3, v3\nv_lshl_add_u32 v26, v27, 9, v26\nv_lshl_add_u32 v26, v4, 4, v26\nv_lshl_add_u32 v26, v2, 7, v26\nv_add_u32 v26, {UB}, v26")
    g(f"v_lshlrev_b32 v28, 4, v4\nv_lshl_add_u32 v28, v2, 7, v28\nv_add_u32 v28, {ZB}, v28")
    for r in range(32): g(f"v_mov_b32 v{32+r}, 0")
    for m in range(8):
        g(f"v_subrev_u32 v29, {512*m}, v24")
        for c in range(4): g(f"ds_read_b128 v[{64+c*4}:{67+c*4}], v29 offset:{RH+c*32}\nds_read_b128 v[{80+c*4}:{83+c*4}], v29 offset:{RL+c*32}")
        for t in range(2):
            if t == 0 and m >= 4: continue
            g(f"v_add_u32 v30, {2048*t - 512*m}, v26\nv_add_u32 v31, {4*t}, v27\nv_cmp_le_u32 vcc, {m}, v31\nv_cndmask_b32 v30, v28, v30, vcc")
            for c in range(4): g(f"ds_read_b128 v[{104+t*16+c*4}:{107+t*16+c*4}], v30 offset:{c*32}")
        g("s_waitcnt lgkmcnt(0)")
        for t in range(2):
            if t == 0 and m >= 4: continue
            for c in range(4):
                g(f"v_mfma_f32_32x32x16_bf16 v[{32+t*16}:{47+t*16}], v[{64+c*4}:{67+c*4}], v[{104+t*16+c*4}:{107+t*16+c*4}], v[{32+t*16}:{47+t*16}]")
                g(f"v_mfma_f32_32x32x16_bf16 v[{32+t*16}:{47+t*16}], v[{80+c*4}:{83+c*4}], v[{104+t*16+c*4}:{107+t*16+c*4}], v[{32+t*16}:{47+t*16}]")
        g("s_nop 7\ns_nop 7")
    g("s_nop 15")
    g("s_barrier\nv_and_b32 v29, 7, v3\nv_lshlrev_b32 v29, 2, v29\nv_lshl_add_u32 v29, v27, 10, v29\nv_lshl_add_u32 v29, v4, 7, v29\nv_lshl_add_u32 v29, v2, 13, v29")
    for t in range(2):
        for r in range(16): g(f"ds_write_b32 v29, v{32+t*16+r} offset:{UB + t*4096 + ((r//4)*8 + r%4)*32}")
    g("s_waitcnt lgkmcnt(0)\ns_barrier\nv_lshlrev_b32 v24, 5, v0")
    for w in range(4): g(f"ds_read_b128 v[{32+8*w}:{35+8*w}], v24 offset:{UB+8192*w}\nds_read_b128 v[{36+8*w}:{39+8*w}], v24 offset:{UB+8192*w+16}")
    g("v_lshlrev_b32 v24, 4, v0\ns_waitcnt lgkmcnt(0)")
    for q in range(8): g(f"v_add_f32 v{32+q}, v{32+q}, v{40+q}\nv_add_f32 v{48+q}, v{48+q}, v{56+q}\nv_add_f32 v{32+q}, v{32+q}, v{48+q}")
    for q in range(4): g(f"v_cvt_pk_bf16_f32 v{64+q}, v{32+2*q}, v{33+2*q}")
    g(f"s_add_u32 s31, s30, {WS_HT}\nbuffer_store_dwordx4 v[64:67], v24, s[44:47], s31 offen")
    g.lab("conv_end"); g("s_endpgm")
    return (nm, (640, 1, 1), (256, 1, 1), LDS2, 136)

def main():
    g = G()
    ks = []
    import gemm
    for f in (k1, k2, k3, gemm.k4, gemm.k5):
        ks.append(f(g))
    hdr = open(f"cdna_kernels/{NAME}.s.ref").read().split("; Override launch")[0]
    out = hdr
    for nm, gr, bl, lds, vg in ks:
        out += f"; @launch kernel={nm} grid=({gr[0]},{gr[1]},{gr[2]}) block=({bl[0]},{bl[1]},{bl[2]}) lds={lds}\n"
    out += '.amdgcn_target "amdgcn-amd-amdhsa--gfx950"\n.text\n' + "\n".join(g.l) + '\n.section .rodata,"a"\n'
    for nm, gr, bl, lds, vg in ks: out += desc(nm, vg)
    open(f"cdna_kernels/{NAME}.s", "w").write(out)
main()
```
